```python
import torch

def _softmax(x, axis=-1):
    return torch.softmax(x, dim=axis)

def _gelu(x):
    return torch.nn.functional.gelu(x, approximate='tanh')

def _silu(x):
    return torch.nn.functional.silu(x)

def _sigmoid(x):
    return torch.sigmoid(x)

def _layernorm(x, axis=-1, eps=1e-05):
    m = x.mean(dim=axis, keepdim=True)
    v = x.var(dim=axis, keepdim=True, unbiased=False)
    return (x - m) / torch.sqrt(v + eps)

def _scatter_add(tgt, idx, src, axis=0):
    return tgt.clone().index_add_(axis, idx, src)

def _segment_sum(src, seg, n):
    out = torch.zeros((n,) + src.shape[1:], dtype=src.dtype)
    return out.index_add_(0, seg, src)

def _pad(x, pw):
    flat = tuple((v for pair in reversed(pw) for v in pair))
    return torch.nn.functional.pad(x, flat)
kernel_name = 'adaLN_cond__sliding_block_cached__geglu_ffn__decode'

def setup_inputs():

    _w = lambda a: (lambda t: t.to(torch.bfloat16) if t.is_floating_point() else t)(torch.as_tensor(a))

    def _A_setup():
        B, Sq, D = (1, 1, 512)
        Hq, Hkv, Sk, Dh = (32, 8, 65536, 128)
        assert Hq % Hkv == 0, (Hq, Hkv)
        return {'x': _w((lambda *s: torch.randn(*s, dtype=torch.bfloat16) * 0.1)(B, Sq, D)), 'k_cache': _w((lambda *s: torch.randn(*s, dtype=torch.bfloat16) * 0.8)(B, Hkv, Sk, Dh)), 'v_cache': _w((lambda *s: torch.randn(*s, dtype=torch.bfloat16) * 1.6)(B, Hkv, Sk, Dh)), 'wq': _w((lambda *s: torch.randn(*s, dtype=torch.bfloat16) * 0.8)(D, Hq * Dh) * D ** (-0.5)), 'wo': _w((lambda *s: torch.randn(*s, dtype=torch.bfloat16) * 1.6)(Hq * Dh, D) * (Hq * Dh) ** (-0.5))}
    _A_in = _A_setup()

    def _B_setup():
        B, S, D, F = (1, 1, 512, 1792)
        return {'x': _w((lambda *s: torch.randn(*s, dtype=torch.bfloat16) * 0.1)(B, S, D)), 'w_gate': _w((lambda *s: torch.randn(*s, dtype=torch.bfloat16) * 0.2)(D, F)), 'w_up': _w((lambda *s: torch.randn(*s, dtype=torch.bfloat16) * 0.2)(D, F)), 'w_down': _w((lambda *s: torch.randn(*s, dtype=torch.bfloat16) * 0.2)(F, D))}
    _B_in = _B_setup()
    return {'A_x': _A_in['x'], 'A_k_cache': _A_in['k_cache'], 'A_v_cache': _A_in['v_cache'], 'A_wq': _A_in['wq'], 'A_wo': _A_in['wo'], 'B_x': _B_in['x'], 'B_w_gate': _B_in['w_gate'], 'B_w_up': _B_in['w_up'], 'B_w_down': _B_in['w_down'], 'c': _w((lambda *s: torch.randn(*s, dtype=torch.bfloat16) * 0.4)(1, 512) * 8.0), 'w_mod': _w((lambda *s: torch.randn(*s, dtype=torch.bfloat16) * 0.4)(512, 6 * 512) * 512 ** (-0.5) * 8.0)}

def reference(A_x, A_k_cache, A_v_cache, A_wq, A_wo, B_x, B_w_gate, B_w_up, B_w_down, c, w_mod):

    def _A_ref(x, k_cache, v_cache, wq, wo):
        B, Sq, D = x.shape
        Hq, Dh = (32, 128)
        Hkv, Sk = (k_cache.shape[1], k_cache.shape[2])
        W = min(4096, max(256, Sk // 4))
        rep = Hq // Hkv
        q = (lambda x, *d: x.permute(*d))((x @ wq).reshape(B, Sq, Hq, Dh), 0, 2, 1, 3)
        k = (lambda x, n, axis: torch.repeat_interleave(x, n, dim=axis))(k_cache[:, :, Sk - W:, :], rep, axis=1)
        v = (lambda x, n, axis: torch.repeat_interleave(x, n, dim=axis))(v_cache[:, :, Sk - W:, :], rep, axis=1)
        scores = torch.einsum('bhqd,bhkd->bhqk', q, k) * Dh ** (-0.5)
        p = _softmax(scores, axis=-1)
        o = torch.einsum('bhqk,bhkd->bhqd', p, v)
        return (lambda x, *d: x.permute(*d))(o, 0, 2, 1, 3).reshape(B, Sq, Hq * Dh) @ wo

    def _B_ref(x, w_gate, w_up, w_down):
        return _gelu(x @ w_gate) * (x @ w_up) @ w_down
    x = A_x
    mod = (_silu(c) @ w_mod).reshape(c.shape[0], 6, 1, -1)
    sa, ca, ga, sb, cb, gb = (mod[:, 0].clone(), mod[:, 1].clone(), mod[:, 2].clone(), mod[:, 3].clone(), mod[:, 4].clone(), mod[:, 5].clone())
    h = _layernorm(x, axis=-1) * (1 + ca) + sa
    x = x + ga * _A_ref(h, A_k_cache, A_v_cache, A_wq, A_wo)
    h = _layernorm(x, axis=-1) * (1 + cb) + sb
    x = x + gb * _B_ref(h, B_w_gate, B_w_up, B_w_down)
    return x
```

```python
KN = "adaLN_cond__sliding_block_cached__geglu_ffn__decode"
HEADER = open("cdna_kernels/%s.s.ref" % KN).read().split("; Override launch geometry")[0]

class Asm:
    def __init__(self):
        self.lines = []
        self.lab = 0
    def __call__(self, s):
        for l in s.strip("\n").split("\n"):
            self.lines.append("    " + l.strip() if not l.strip().endswith(":") else l.strip())
    def label(self, base="L"):
        self.lab += 1
        return "%s_%d" % (base, self.lab)
    def text(self):
        return "\n".join(self.lines) + "\n"

def wrap(body, grid, block, lds, vgpr, sgpr=102, accum=None):
    if accum is None:
        accum = ((vgpr + 3) // 4) * 4
        if accum > 256: accum = 256
    return HEADER + """; Override launch geometry by editing the next line (default: block=256,
; grid=ceil(out_elems/256), lds=0). Harness parses it; keep it on one line.
; @launch grid=(%d,1,1) block=(%d,1,1) lds=%d
.amdgcn_target "amdgcn-amd-amdhsa--gfx950"
.text
.globl %s_kernel
.p2align 8
.type %s_kernel,@function
%s_kernel:
%s
s_endpgm
.section .rodata,"a"
.p2align 6
.amdhsa_kernel %s_kernel
  .amdhsa_next_free_vgpr %d
  .amdhsa_next_free_sgpr %d
  .amdhsa_accum_offset %d
  .amdhsa_group_segment_fixed_size 0
  .amdhsa_kernarg_size 112
  .amdhsa_user_sgpr_count 2
  .amdhsa_user_sgpr_kernarg_segment_ptr 1
  .amdhsa_system_sgpr_workgroup_id_x 1
.end_amdhsa_kernel
""" % (grid, block, lds, KN, KN, KN, body, KN, vgpr, sgpr, accum)
```

```python
import re
TRANS = ("v_exp_f32","v_log_f32","v_rcp_f32","v_rsq_f32","v_sqrt_f32","v_sin_f32","v_cos_f32","v_rcp_iflag_f32")
def regs(tok):
    tok = tok.strip()
    tok = re.sub(r"^-", "", tok)
    m = re.match(r"^abs\((.*)\)$", tok) or re.match(r"^\|(.*)\|$", tok)
    if m: tok = m.group(1)
    m = re.match(r"^([vsa])(\d+)$", tok)
    if m: return [(m.group(1), int(m.group(2)))]
    m = re.match(r"^([vsa])\[(\d+):(\d+)\]$", tok)
    if m: return [(m.group(1), i) for i in range(int(m.group(2)), int(m.group(3)) + 1)]
    if tok == "vcc": return [("s", 106), ("s", 107)]
    if tok == "vcc_lo": return [("s", 106)]
    if tok == "vcc_hi": return [("s", 107)]
    if tok == "exec": return [("s", 126), ("s", 127)]
    if tok == "m0": return [("s", 124)]
    return []
def split_ops(s):
    out = []; depth = 0; cur = ""
    for ch in s:
        if ch in "[(": depth += 1
        if ch in "])": depth -= 1
        if ch == "," and depth == 0: out.append(cur); cur = ""
        else: cur += ch
    if cur.strip(): out.append(cur)
    return [o.strip() for o in out]
class I:
    pass
def parse(line):
    t = line.split(";")[0].strip()
    if not t or t.endswith(":") or t.startswith("."): return None
    p = t.split(None, 1)
    i = I(); i.op = p[0]; rest = p[1] if len(p) > 1 else ""
    ops = split_ops(rest)
    clean = []
    for o in ops:
        clean.append(o.split()[0] if not o.startswith(("abs(", "-abs(")) else o.split()[0])
    i.mods = rest
    op = i.op
    i.valu = op.startswith("v_") and not op.startswith("v_mfma")
    i.mfma = op.startswith("v_mfma")
    i.trans = any(op.startswith(x) for x in TRANS)
    i.dpp = ("_dpp" in op) or ("row_" in rest) or ("quad_perm" in rest)
    i.perml = op.startswith("v_permlane")
    i.rdlane = op.startswith(("v_readlane", "v_readfirstlane"))
    i.wrlane = op.startswith("v_writelane")
    i.vmem = op.startswith(("buffer_", "global_", "flat_"))
    i.ds = op.startswith("ds_")
    i.salu = op.startswith("s_")
    i.nop = 0
    if op == "s_nop": i.nop = int(rest, 0)
    R = [regs(o) for o in clean]
    i.dst = []; i.src = []; i.srcC = []; i.srcAB = []; i.store_data = []
    if i.mfma:
        i.dst = R[0]; i.srcAB = R[1] + R[2]; i.srcC = R[3]; i.src = R[1] + R[2] + R[3]
        i.passes = 8 if "32x32x16" in op or "32x32x8" in op else (4 if "16x16" in op else 2)
        if op.endswith("_f32") and "x4_f32" in op: i.passes = 8
    elif i.valu:
        if op.startswith("v_cmp"):
            i.dst = R[0]; i.src = sum(R[1:], [])
            if op.startswith("v_cmpx"): i.dst = i.dst + regs("exec")
        elif i.perml:
            i.dst = R[0] + R[1]; i.src = R[0] + R[1]
        elif op.startswith(("v_add_co", "v_sub_co", "v_addc_co", "v_subb_co", "v_div_scale")):
            i.dst = R[0] + R[1]; i.src = sum(R[2:], [])
        else:
            i.dst = R[0]; i.src = sum(R[1:], [])
            if op.startswith(("v_fmac", "v_dot2c", "v_writelane", "v_mac")) or i.dpp: i.src = i.src + R[0]
            if op.startswith("v_cndmask") and len(R) == 3: i.src = i.src + regs("vcc")
    elif i.vmem:
        if "store" in op or "atomic" in op:
            if op.startswith("buffer_"):
                i.store_data = R[0]; i.src = sum(R, [])
            else:
                i.store_data = R[1]; i.src = sum(R, [])
        elif " lds" in rest or "_lds_" in op:
            i.src = sum(R, []) + regs("m0")
        else:
            i.dst = R[0]; i.src = sum(R[1:], [])
    elif i.ds:
        if op.startswith(("ds_write", "ds_add", "ds_max", "ds_min")):
            i.src = sum(R, [])
        else:
            i.dst = R[0]; i.src = sum(R[1:], [])
    elif i.salu:
        if op.startswith(("s_cmp", "s_cbranch", "s_branch", "s_waitcnt", "s_barrier", "s_nop", "s_sleep", "s_endpgm", "s_setprio", "s_bitcmp")):
            i.src = sum(R, [])
        else:
            i.dst = R[0] if R else []; i.src = sum(R[1:], [])
            if "saveexec" in op: i.dst = i.dst + regs("exec")
    return i
def need(p, c):
    n = 0
    pd = set(p.dst);
    vd = {r for r in pd if r[0] in "va"}; sd = {r for r in pd if r[0] == "s"}
    cs = set(c.src); cd = set(c.dst)
    if p.valu:
        if c.mfma and vd & cs: n = max(n, 2)
        if c.dpp and vd & cs: n = max(n, 2)
        if c.perml and vd & cs: n = max(n, 2)
        if c.rdlane and vd & cs: n = max(n, 1)
        if p.trans and c.valu and not c.trans and vd & cs: n = max(n, 1)
        if p.trans and (c.vmem or c.ds or c.mfma) and vd & cs: n = max(n, 2 if c.mfma else 1)
        if sd & cs:
            if c.vmem: n = max(n, 5)
            if c.valu: n = max(n, 2)
            if (c.rdlane or c.wrlane): n = max(n, 4)
            if c.salu: n = max(n, 1)
        if ("s", 126) in sd:
            if c.dpp: n = max(n, 5)
            if c.mfma or c.perml or c.rdlane or c.wrlane: n = max(n, 4)
        if ("sdwa" in p.op or "op_sel" in p.mods) and c.valu and vd & cs: n = max(n, 1)
        if p.op.startswith("v_dot") and vd & (cs | cd) and not (c.op == p.op): n = max(n, 3)
    if p.mfma:
        tab_ab = {2: 5, 4: 8, 8: 12, 16: 20}[p.passes]
        tab_ov = {2: 4, 4: 6, 8: 10, 16: 18}[p.passes]
        if c.mfma:
            if vd & set(c.srcAB): n = max(n, tab_ab)
            if vd & set(c.srcC):
                if p.dst == c.srcC and p.passes == c.passes: n = max(n, 2 if p.passes == 2 else 0)
                else: n = max(n, tab_ov)
            elif vd & cd: n = max(n, tab_ov)
        elif (c.valu or c.vmem or c.ds) and vd & (cs | cd): n = max(n, tab_ab)
        if c.valu and set(p.srcC) & cd: n = max(n, {2: 1, 4: 3, 8: 7, 16: 15}[p.passes])
    if p.vmem and len(p.store_data) >= 3 and set(p.store_data) & cd: n = max(n, 2)
    if p.salu and ("s", 124) in sd and (c.vmem and ("s", 124) in cs): n = max(n, 1)
    return n
def fix(lines, verbose=False):
    out = []; hist = []
    for line in lines:
        c = parse(line)
        if c is None:
            out.append(line); continue
        req = 0; dist = 0
        for p in reversed(hist):
            n = need(p, c)
            if n > dist: req = max(req, n - dist)
            dist += (p.nop + 1)
            if dist > 24: break
        if req > 0:
            nop = parse("s_nop %d" % (req - 1))
            out.append("    s_nop %d" % (req - 1))
            hist.append(nop)
        out.append(line); hist.append(c)
        if len(hist) > 40: hist = hist[-30:]
    return out
```

```python
import sys, struct
sys.path.insert(0, "work")
from asmlib import *
import hazard

def f2u(x): return struct.unpack("<I", struct.pack("<f", x))[0]
L2E = 1.4426950408889634
WS_EPOCH = 0
WS_MOD  = 0x1000
WS_Q    = 0x10000
WS_X1   = 0x14000
WS_PART = 0x20000
WS_AO   = 0xA0000
WS_YP   = 0xE0000
WS_DBG  = 0x100000
WS_DUMP = 0x200000
WS_SIZE = 0x400000
KV_WIN = (65536 - 4096) * 256
SPIN_MAX = 400000

def gen(diag=False, nt=" nt"):
    a = Asm()
    nst = [0]
    def stamp(i):
        if diag: a(f"s_memrealtime s[{60+2*i}:{61+2*i}]")
    def srd(base, size):
        a(f"s_mov_b32 s{base+2}, {size}")
        a(f"s_mov_b32 s{base+3}, 0x20000")
    def perm_group(src, dst):
        for jp in range(4):
            for d in range(4):
                r0 = src + 4*(2*jp) + d; r1 = src + 4*(2*jp+1) + d
                a(f"v_perm_b32 v{dst + 4*(2*d) + jp}, v{r1}, v{r0}, s33")
                a(f"v_perm_b32 v{dst + 4*(2*d+1) + jp}, v{r1}, v{r0}, s34")
    def mfma_group(acc, A, frags, first):
        for i in range(8):
            c = "0" if first else f"v[{acc+4*i}:{acc+4*i+3}]"
            a(f"v_mfma_f32_16x16x32_bf16 v[{acc+4*i}:{acc+4*i+3}], v[{A}:{A+3}], v[{frags+4*i}:{frags+4*i+3}], {c}")
    def get_tag():
        a("s_load_dword s32, s[20:21], 0")
    def fin_tag():
        a("s_waitcnt lgkmcnt(0)")
        a("s_mul_i32 s32, s32, 0x9E3779B5")
        a("s_add_u32 s32, s32, 0x7F4A7C15")
    def poll(loads, tagregs, name):
        L = a.label(name)
        a(f"s_mov_b32 s35, 0")
        a(f"{L}:")
        for l in loads: a(l)
        a("s_add_u32 s35, s35, 1")
        a(f"s_cmp_gt_u32 s35, {SPIN_MAX}")
        a("s_cbranch_scc1 L_end")
        a("s_waitcnt vmcnt(0)")
        a(f"v_xor_b32 v15, s32, v{tagregs[0]}")
        for t in tagregs[1:]:
            a(f"v_xor_b32 v14, s32, v{t}")
            a(f"v_or_b32 v15, v15, v14")
        a("v_cmp_ne_u32 vcc, 0, v15")
        a(f"s_cbranch_vccnz {L}")
    def wave_sum(v, s):
        for r in (8, 4, 2, 1):
            a(f"v_add_f32_dpp v{v}, v{v}, v{v} row_ror:{r} row_mask:0xf bank_mask:0xf")
        a(f"v_add_f32_dpp v{v}, v{v}, v{v} row_bcast:15 row_mask:0xa bank_mask:0xf")
        a(f"v_add_f32_dpp v{v}, v{v}, v{v} row_bcast:31 row_mask:0xc bank_mask:0xf")
        a(f"v_readlane_b32 s{s}, v{v}, 63")
    def xred(v, t, op, bits):
        if 3 in bits:
            a(f"{op}_dpp v{v}, v{v}, v{v} row_ror:8 row_mask:0xf bank_mask:0xf")
        if 4 in bits:
            a(f"v_mov_b32 v{t}, v{v}")
            a(f"v_permlane16_swap_b32 v{t}, v{v}")
            a(f"{op} v{v}, v{v}, v{t}")
        if 5 in bits:
            a(f"v_mov_b32 v{t}, v{v}")
            a(f"v_permlane32_swap_b32 v{t}, v{v}")
            a(f"{op} v{v}, v{v}, v{t}")
    def lo(d, s): a(f"v_lshlrev_b32 v{d}, 16, v{s}")
    def hi(d, s): a(f"v_and_b32 v{d}, 0xffff0000, v{s}")
    def rnd2(x, y, t):
        a(f"v_cvt_pk_bf16_f32 v{t}, v{x}, v{y}")
        lo(x, t); hi(y, t)
    def ln_stats(src4, t0, s_mean, s_rstd_v):
        for k in range(4):
            lo(t0+2*k, src4[k]); hi(t0+2*k+1, src4[k])
        acc = t0+8
        a(f"v_add_f32 v{acc}, v{t0}, v{t0+1}")
        for k in range(2, 8): a(f"v_add_f32 v{acc}, v{acc}, v{t0+k}")
        wave_sum(acc, 36)
        a(f"v_mov_b32 v{acc+1}, {hex(f2u(1.0/512))}")
        a(f"v_mul_f32 v{acc+1}, s36, v{acc+1}")
        for k in range(8): a(f"v_sub_f32 v{t0+k}, v{t0+k}, v{acc+1}")
        a(f"v_mul_f32 v{acc}, v{t0}, v{t0}")
        for k in range(1, 8): a(f"v_fmac_f32 v{acc}, v{t0+k}, v{t0+k}")
        wave_sum(acc, 37)
        a(f"v_mov_b32 v{acc}, {hex(f2u(1.0/512))}")
        a(f"v_mul_f32 v{acc}, s37, v{acc}")
        rnd2(acc+1, acc, t0)
        a(f"v_add_f32 v{acc}, {hex(f2u(1e-5))}, v{acc}")
        a(f"v_cvt_pk_bf16_f32 v{t0}, v{acc}, v{acc}")
        lo(acc, t0)
        a(f"v_sqrt_f32 v{acc}, v{acc}")
        a(f"v_cvt_pk_bf16_f32 v{t0}, v{acc}, v{acc}")
        lo(acc, t0)
        a(f"v_rcp_f32 v{s_rstd_v}, v{acc}")
        a(f"v_mov_b32 v{s_mean}, v{acc+1}")
    def write_partials(acc, vaddr, off):
        a("s_mov_b32 exec_lo, 0xff")
        a("s_mov_b32 exec_hi, 0xff00")
        for i in range(0, 8, 2):
            a(f"ds_write2_b32 v{vaddr}, v{acc+4*i}, v{acc+4*i+4} offset0:{off//4+i} offset1:{off//4+i+1}")
        a("s_mov_b64 exec, -1")
    def sel_pair(acc, d0):
        for u in range(2):
            a(f"v_cndmask_b32 v{d0+u}, v{acc+4*u}, v{acc+4*(2+u)}, s[40:41]")
            a(f"v_cndmask_b32 v{d0+u}, v{d0+u}, v{acc+4*(4+u)}, s[42:43]")
            a(f"v_cndmask_b32 v{d0+u}, v{d0+u}, v{acc+4*(6+u)}, s[44:45]")
    def gq_masks():
        a("s_mov_b32 s40, 0xffff0000"); a("s_mov_b32 s41, 0")
        a("s_mov_b32 s42, 0"); a("s_mov_b32 s43, 0xffff")
        a("s_mov_b32 s44, 0"); a("s_mov_b32 s45, 0xffff0000")

    stamp(0)
    a(f"""
    s_cmp_ge_u32 s2, 256
    s_cbranch_scc1 L_exit
    s_load_dwordx2 s[20:21], s[0:1], 104
    s_lshr_b32 s4, s2, 3
    s_and_b32 s3, s2, 7
    v_lshrrev_b32 v1, 6, v0
    v_and_b32 v0, 63, v0
    v_readfirstlane_b32 s5, v1
    v_lshrrev_b32 v2, 4, v0          ; gq
    v_and_b32 v3, 15, v0             ; idx
    s_mov_b32 s33, 0x05040100
    s_mov_b32 s34, 0x07060302
    """)
    srd(20, WS_SIZE)
    a("""
    s_cmp_lt_u32 s4, 16
    s_cbranch_scc1 L_att
    s_cmp_lt_u32 s4, 24
    s_cbranch_scc1 L_bd
    s_cmp_lt_u32 s4, 28
    s_cbranch_scc1 L_m
    s_branch L_ef
    """)

    a("L_att:")
    a("s_load_dwordx2 s[8:9], s[0:1], 8")
    a("s_load_dwordx2 s[12:13], s[0:1], 16")
    srd(8, 0x8000000); srd(12, 0x8000000)
    a(f"""
    s_lshl_b32 s36, s3, 24
    s_lshl_b32 s37, s4, 16
    s_lshl_b32 s38, s5, 14
    s_add_u32 s36, s36, s37
    s_add_u32 s36, s36, s38
    s_add_u32 s36, s36, {KV_WIN}
    s_add_u32 s37, s36, 4096
    s_add_u32 s38, s36, 8192
    s_add_u32 s39, s36, 12288
    v_and_b32 v4, 3, v3
    v_lshlrev_b32 v4, 2, v4
    v_lshrrev_b32 v5, 2, v3
    v_add_u32 v4, v4, v5
    v_lshlrev_b32 v4, 8, v4
    v_lshl_add_u32 v4, v2, 4, v4     ; voffK
    v_lshlrev_b32 v5, 4, v0
    s_waitcnt lgkmcnt(0)
    """)
    stamp(1)
    KR, VR, SP, QF, ST, PO, AC = 16, 80, 144, 176, 192, 208, 216
    for bt in range(4):
        for kk in range(4):
            r = KR + 4*(4*bt+kk)
            a(f"buffer_load_dwordx4 v[{r}:{r+3}], v4, s[8:11], s{36+bt} offen offset:{kk*64}{nt}")
    get_tag()
    for n in range(16):
        r = VR + 4*n
        a(f"buffer_load_dwordx4 v[{r}:{r+3}], v5, s[12:15], s{36+n//4} offen offset:{(n%4)*1024}{nt}")
    stamp(2)
    fin_tag()
    a(f"s_lshl_b32 s46, s3, 11")
    a(f"s_add_u32 s46, s46, {WS_Q}")
    a(f"s_lshl_b32 s47, s5, 10")
    a(f"v_lshl_add_u32 v6, v0, 3, s47")
    a(f"v_and_b32 v7, 3, v3")
    a(f"v_lshlrev_b32 v7, 8, v7")
    a(f"v_lshl_add_u32 v7, v2, 4, v7")
    a(f"v_add_u32 v7, s47, v7")
    a("s_waitcnt vmcnt(8)")
    perm_group(VR, SP)
    a("s_waitcnt vmcnt(0)")
    stamp(3)
    perm_group(VR+32, VR)
    poll([f"buffer_load_dwordx4 v[248:251], v5, s[20:23], s46 offen sc1",
          f"buffer_load_dwordx4 v[252:255], v5, s[20:23], s46 offen offset:1024 sc1"], [251, 255], "L_pq")
    stamp(4)
    a("ds_write_b64 v6, v[248:249]")
    a("ds_write_b64 v6, v[252:253] offset:512")
    a("s_waitcnt lgkmcnt(0)")
    for kk in range(4):
        a(f"ds_read_b128 v[{QF+4*kk}:{QF+4*kk+3}], v7 offset:{kk*64}")
    a("s_waitcnt lgkmcnt(0)")
    for kk in range(4):
        for bt in range(4):
            r = KR + 4*(4*bt+kk)
            c = "0" if kk == 0 else f"v[{ST+4*bt}:{ST+4*bt+3}]"
            a(f"v_mfma_f32_16x16x32_bf16 v[{ST+4*bt}:{ST+4*bt+3}], v[{r}:{r+3}], v[{QF+4*kk}:{QF+4*kk+3}], {c}")
    a(f"s_mov_b32 s48, {hex(f2u(128**-0.5))}")
    a(f"s_mov_b32 s49, {hex(f2u(L2E))}")
    for n in range(0, 16, 2):
        rnd2(ST+n, ST+n+1, 8)
        a(f"v_mul_f32 v{ST+n}, s48, v{ST+n}")
        a(f"v_mul_f32 v{ST+n+1}, s48, v{ST+n+1}")
        rnd2(ST+n, ST+n+1, 8)
    a(f"v_max3_f32 v9, v{ST}, v{ST+1}, v{ST+2}")
    for n in range(3, 15, 2):
        a(f"v_max3_f32 v9, v9, v{ST+n}, v{ST+n+1}")
    a(f"v_max_f32 v9, v9, v{ST+15}")
    xred(9, 10, "v_max_f32", (4, 5))
    a(f"v_mul_f32 v9, s49, v9")
    for n in range(16):
        a(f"v_fma_f32 v{ST+n}, v{ST+n}, s49, -v9")
    for n in range(16):
        a(f"v_exp_f32 v{ST+n}, v{ST+n}")
    for n in range(0, 16, 2):
        a(f"v_cvt_pk_bf16_f32 v{PO+n//2}, v{ST+n}, v{ST+n+1}")
    mfma_group(AC, PO, SP, True)
    mfma_group(AC, PO+4, VR, False)
    a(f"v_add_f32 v10, v{ST}, v{ST+1}")
    for n in range(2, 16): a(f"v_add_f32 v10, v10, v{ST+n}")
    xred(10, 11, "v_add_f32", (4, 5))
    a(f"s_lshl_b32 s47, s5, 11")
    a(f"v_lshl_add_u32 v6, v3, 4, s47")
    a(f"s_lshl_b32 s47, s5, 5")
    a(f"v_lshl_add_u32 v7, v3, 3, s47")
    a(f"v_mov_b32 v12, v9")
    a(f"v_mov_b32 v13, v10")
    a("s_mov_b64 exec, 0xffff")
    for i in range(8):
        a(f"ds_write_b128 v6, v[{AC+4*i}:{AC+4*i+3}] offset:{4096+i*256}")
    a("s_mov_b64 exec, 0xf")
    a(f"ds_write_b64 v7, v[12:13] offset:12288")
    a("s_mov_b64 exec, -1")
    a(f"v_and_b32 v6, 3, v0")
    a(f"v_lshlrev_b32 v6, 9, v6")
    a(f"v_lshrrev_b32 v7, 2, v0")
    a(f"v_lshl_add_u32 v6, v7, 4, v6")
    a(f"s_lshl_b32 s47, s5, 2")
    a(f"v_add_u32 v6, s47, v6")
    a(f"v_add_u32 v6, 4096, v6")
    a(f"s_lshl_b32 s47, s5, 3")
    a(f"v_mov_b32 v7, s47")
    a("s_waitcnt lgkmcnt(0)")
    a("s_barrier")
    for w in range(4):
        a(f"ds_read_b64 v[{16+2*w}:{17+2*w}], v7 offset:{12288+w*32}")
    for w in range(4):
        a(f"ds_read2st64_b32 v[{24+2*w}:{25+2*w}], v6 offset0:{w*8} offset1:{w*8+1}")
    a("s_waitcnt lgkmcnt(0)")
    a("v_max3_f32 v8, v16, v18, v20")
    a("v_max_f32 v8, v8, v22")
    for w in range(4):
        a(f"v_sub_f32 v{16+2*w}, v{16+2*w}, v8")
    for w in range(4):
        a(f"v_exp_f32 v{16+2*w}, v{16+2*w}")
    a("v_mul_f32 v9, v16, v17")
    a("v_mul_f32 v32, v16, v24")
    a("v_mul_f32 v33, v16, v25")
    for w in range(1, 4):
        a(f"v_fmac_f32 v9, v{16+2*w}, v{17+2*w}")
        a(f"v_fmac_f32 v32, v{16+2*w}, v{24+2*w}")
        a(f"v_fmac_f32 v33, v{16+2*w}, v{25+2*w}")
    a("v_rcp_f32 v10, v9")
    a("v_log_f32 v34, v9")
    a("v_mul_f32 v32, v32, v10")
    a("v_mul_f32 v33, v33, v10")
    a("v_add_f32 v34, v34, v8")
    a("v_mov_b32 v35, s32")
    a(f"s_lshl_b32 s46, s3, 2")
    a(f"s_add_u32 s46, s46, s5")
    a(f"s_lshl_b32 s46, s46, 4")
    a(f"s_add_u32 s46, s46, s4")
    a(f"s_lshl_b32 s46, s46, 10")
    a(f"s_add_u32 s46, s46, {WS_PART}")
    a("buffer_store_dwordx4 v[32:35], v5, s[20:23], s46 offen sc1")
    stamp(5)
    a("s_branch L_end")

    a("L_bd:")
    a("s_load_dwordx2 s[8:9], s[0:1], 24")
    a("s_load_dwordx2 s[12:13], s[0:1], 32")
    a("s_load_dwordx2 s[24:25], s[0:1], 0")
    srd(8, 512*8192); srd(12, 4096*1024); srd(24, 1024)
    WQ, SPb, WO, ACb, AOP = 16, 80, 112, 176, 208
    a(f"""
    s_lshl_b32 s6, s3, 3
    s_add_u32 s6, s6, s4
    s_sub_u32 s6, s6, 16             ; b
    v_lshrrev_b32 v4, 3, v3          ; sub
    v_and_b32 v5, 7, v3              ; o
    v_lshlrev_b32 v4, 2, v4
    v_add_u32 v4, v4, v2
    v_lshlrev_b32 v6, 16, v4         ; *8*8192
    v_lshl_add_u32 v6, v5, 4, v6
    s_lshl_b32 s36, s5, 20           ; 128w*8192
    s_lshl_b32 s37, s6, 7
    s_add_u32 s36, s36, s37
    v_lshlrev_b32 v7, 4, v0          ; lane*16
    s_lshl_b32 s38, s5, 8
    v_lshl_add_u32 v8, v0, 2, s38
    s_waitcnt lgkmcnt(0)
    """)
    stamp(1)
    a("buffer_load_dwordx4 v[216:219], v7, s[24:27], 0 offen")
    a("buffer_load_dword v220, v8, s[24:27], 0 offen")
    get_tag()
    for rg in range(2):
        for j in range(8):
            r = WQ + 4*(8*rg+j)
            a(f"s_add_u32 s37, s36, {(64*rg+j)*8192}")
            a(f"buffer_load_dwordx4 v[{r}:{r+3}], v6, s[8:11], s37 offen{nt}")
    stamp(2)
    fin_tag()
    a("s_waitcnt vmcnt(16)")
    ln_stats([216,217,218,219], 224, 222, 223)
    lo(224, 220); hi(225, 220)
    a("v_sub_f32 v224, v224, v222"); a("v_sub_f32 v225, v225, v222")
    rnd2(224, 225, 226)
    a("v_mul_f32 v224, v224, v223"); a("v_mul_f32 v225, v225, v223")
    rnd2(224, 225, 226)
    a("s_lshl_b32 s46, s5, 10")
    a(f"s_add_u32 s46, s46, {WS_MOD}")
    a(f"s_add_u32 s47, s46, 4096")
    a(f"s_add_u32 s48, s46, 24576")
    a(f"s_add_u32 s49, s46, {24576+4096}")
    a(f"v_add_u32 v9, 8192, v8")
    a(f"v_lshl_add_u32 v10, v4, 4, s38")
    a(f"v_add_u32 v10, 8192, v10")
    a("s_lshl_b32 s39, s5, 9")
    a("v_lshl_add_u32 v11, v3, 5, s39")
    a("s_waitcnt vmcnt(8)")
    perm_group(WQ, SPb)
    a("s_waitcnt vmcnt(0)")
    perm_group(WQ+32, WQ)
    stamp(3)
    poll([f"buffer_load_dwordx4 v[228:231], v7, s[20:23], s46 offen sc1",
          f"buffer_load_dwordx4 v[232:235], v7, s[20:23], s48 offen sc1",
          f"buffer_load_dwordx4 v[236:239], v7, s[20:23], s47 offen sc1",
          f"buffer_load_dwordx4 v[240:243], v7, s[20:23], s49 offen sc1"], [231, 235, 239, 243], "L_ph")
    stamp(4)
    a("v_add_f32 v228, v228, v232"); a("v_add_f32 v229, v229, v233")
    a("v_add_f32 v236, v236, v240"); a("v_add_f32 v237, v237, v241")
    rnd2(228, 229, 226); rnd2(236, 237, 227)
    a("v_add_f32 v236, 1.0, v236"); a("v_add_f32 v237, 1.0, v237")
    rnd2(236, 237, 227)
    a("v_mul_f32 v236, v236, v224"); a("v_mul_f32 v237, v237, v225")
    rnd2(236, 237, 227)
    a("v_add_f32 v236, v236, v228"); a("v_add_f32 v237, v237, v229")
    a("v_cvt_pk_bf16_f32 v227, v236, v237")
    a("ds_write_b32 v9, v227")
    a("s_waitcnt lgkmcnt(0)")
    a(f"ds_read_b128 v[{AOP}:{AOP+3}], v10")
    a(f"ds_read_b128 v[{AOP+4}:{AOP+7}], v10 offset:128")
    a("s_waitcnt lgkmcnt(0)")
    mfma_group(ACb, AOP, SPb, True)
    mfma_group(ACb, AOP+4, WQ, False)
    write_partials(ACb, 11, 0)
    a("s_waitcnt lgkmcnt(0)")
    a("s_barrier")
    a("s_cmp_lg_u32 s5, 0")
    a("s_cbranch_scc1 L_bd_skipq")
    for p in range(8):
        a(f"ds_read_b128 v[{16+4*p}:{19+4*p}], v7 offset:{p*256}")
    a("s_waitcnt lgkmcnt(0)")
    for p in range(1, 8):
        for k in range(4): a(f"v_add_f32 v{16+k}, v{16+k}, v{16+4*p+k}")
    a("v_cvt_pk_bf16_f32 v20, v16, v17")
    a("v_cvt_pk_bf16_f32 v21, v18, v19")
    a("v_mov_b32 v22, 0")
    a("v_mov_b32 v23, s32")
    a("s_lshl_b32 s46, s6, 8")
    a(f"s_add_u32 s46, s46, {WS_Q}")
    a("s_mov_b64 exec, 0xffff")
    a("buffer_store_dwordx4 v[20:23], v7, s[20:23], s46 offen sc1")
    a("s_mov_b64 exec, -1")
    a("L_bd_skipq:")
    stamp(5)
    a(f"""
    v_lshlrev_b32 v6, 13, v2         ; 8gq*1024
    v_lshl_add_u32 v6, v3, 4, v6
    s_lshl_b32 s36, s6, 16           ; 64b*1024
    s_add_u32 s36, s36, s38          ; +256w
    """)
    for rg in range(2):
        for j in range(8):
            r = WO + 4*(8*rg+j)
            if j % 4 == 0: a(f"s_add_u32 s37, s36, {(32*rg+j)*1024}")
            a(f"buffer_load_dwordx4 v[{r}:{r+3}], v6, s[12:15], s37 offen offset:{(j%4)*1024}{nt}")
    gq_masks()
    a(f"""
    s_lshr_b32 s46, s6, 1
    s_lshl_b32 s46, s46, 14
    s_and_b32 s47, s6, 1
    s_lshl_b32 s47, s47, 9
    s_add_u32 s46, s46, s47
    s_lshl_b32 s47, s5, 7
    s_add_u32 s46, s46, s47
    s_add_u32 s46, s46, {WS_PART}
    s_add_u32 s47, s46, 8192
    v_lshrrev_b32 v9, 3, v0
    v_lshlrev_b32 v9, 10, v9
    v_and_b32 v10, 7, v0
    v_lshl_add_u32 v9, v10, 4, v9
    ; lds o write: 9216 + w*32 + (l%8)*4 ; read: 9216 + gq*16 + rg*64
    s_lshl_b32 s48, s5, 5
    v_lshl_add_u32 v10, v10, 2, s48
    v_lshlrev_b32 v11, 4, v2
    v_lshl_add_u32 v12, v3, 6, v11
    s_lshl_b32 s48, s6, 12
    s_lshl_b32 s49, s5, 10
    s_add_u32 s48, s48, s49
    s_add_u32 s48, s48, {WS_AO}
    """)
    a("s_waitcnt vmcnt(8)")
    perm_group(WO, SPb)
    a("s_waitcnt vmcnt(0)")
    perm_group(WO+32, WO)
    stamp(6)
    poll([f"buffer_load_dwordx4 v[228:231], v9, s[20:23], s46 offen sc1",
          f"buffer_load_dwordx4 v[232:235], v9, s[20:23], s47 offen sc1"], [231, 235], "L_pp")
    stamp(7)
    a("v_max_f32 v236, v230, v234")
    xred(236, 237, "v_max_f32", (3, 4, 5))
    a("v_sub_f32 v230, v230, v236"); a("v_sub_f32 v234, v234, v236")
    a("v_exp_f32 v230, v230"); a("v_exp_f32 v234, v234")
    a("v_mul_f32 v228, v228, v230"); a("v_mul_f32 v229, v229, v230")
    a("v_fmac_f32 v228, v232, v234"); a("v_fmac_f32 v229, v233, v234")
    a("v_add_f32 v230, v230, v234")
    xred(228, 237, "v_add_f32", (3, 4, 5))
    xred(229, 238, "v_add_f32", (3, 4, 5))
    xred(230, 239, "v_add_f32", (3, 4, 5))
    a("v_rcp_f32 v230, v230")
    a("v_mul_f32 v228, v228, v230"); a("v_mul_f32 v229, v229, v230")
    a("v_cvt_pk_bf16_f32 v228, v228, v229")
    a("ds_write_b32 v10, v228 offset:9216")
    a("s_waitcnt lgkmcnt(0)")
    a("s_barrier")
    a(f"ds_read_b128 v[{AOP}:{AOP+3}], v11 offset:9216")
    a(f"ds_read_b128 v[{AOP+4}:{AOP+7}], v11 offset:{9216+64}")
    a("s_waitcnt lgkmcnt(0)")
    mfma_group(ACb, AOP, SPb, True)
    mfma_group(ACb, AOP+4, WO, False)
    sel_pair(ACb, 228)
    a("v_mov_b32 v230, 0")
    a("v_mov_b32 v231, s32")
    a("buffer_store_dwordx4 v[228:231], v12, s[20:23], s48 offen sc1")
    stamp(8)
    a("s_branch L_end")

    a("L_m:")
    a("s_load_dwordx2 s[8:9], s[0:1], 80")
    a("s_load_dwordx2 s[24:25], s[0:1], 72")
    a("s_load_dwordx2 s[12:13], s[0:1], 0")
    a("s_load_dwordx2 s[28:29], s[0:1], 88")
    srd(8, 512*6144); srd(24, 1024); srd(12, 1024); srd(28, 1024)
    W0, SPm, ACm, SA = 16, 112, 144, 176
    a(f"""
    s_sub_u32 s6, s4, 24
    s_lshl_b32 s6, s6, 3
    s_add_u32 s6, s6, s3             ; mi
    v_lshrrev_b32 v4, 3, v3          ; sub
    v_and_b32 v5, 7, v3              ; o
    v_lshlrev_b32 v4, 2, v4
    v_add_u32 v4, v4, v2             ; 4*sub+gq
    s_mov_b32 s36, {8*6144}
    v_mul_lo_u32 v6, v4, s36
    v_lshl_add_u32 v6, v5, 4, v6     ; voff
    s_lshl_b32 s38, s5, 7            ; 64w*2 bytes
    v_lshl_add_u32 v7, v4, 4, s38
    s_mul_i32 s36, s5, {64*6144}
    s_lshr_b32 s7, s6, 4
    s_and_b32 s37, s6, 15            ; ct
    s_lshl_b32 s37, s37, 7
    s_mul_i32 s39, s7, {256*6144}
    s_add_u32 s37, s37, s39
    s_add_u32 s37, s37, s36
    s_lshl_b32 s39, s6, 7
    s_add_u32 s39, s39, 2048
    s_add_u32 s39, s39, s36
    s_waitcnt lgkmcnt(0)
    """)
    stamp(1)
    a("buffer_load_dwordx4 v[184:187], v7, s[24:27], 0 offen")
    a("buffer_load_dwordx4 v[188:191], v7, s[24:27], 0 offen offset:512")
    get_tag()
    for j in range(8):
        r = W0 + 4*j
        a(f"s_add_u32 s46, s37, {j*6144}")
        a(f"buffer_load_dwordx4 v[{r}:{r+3}], v6, s[8:11], s46 offen{nt}")
    stamp(2)
    fin_tag()
    a("s_waitcnt vmcnt(8)")
    a(f"s_mov_b32 s49, {hex(f2u(-L2E))}")
    for k in range(8):
        lo(192, 184+k); hi(193, 184+k)
        a("v_mul_f32 v194, s49, v192"); a("v_mul_f32 v195, s49, v193")
        a("v_exp_f32 v194, v194"); a("v_exp_f32 v195, v195")
        a("v_add_f32 v194, 1.0, v194"); a("v_add_f32 v195, 1.0, v195")
        a("v_rcp_f32 v194, v194"); a("v_rcp_f32 v195, v195")
        a("v_mul_f32 v192, v192, v194"); a("v_mul_f32 v193, v193, v195")
        a(f"v_cvt_pk_bf16_f32 v{SA+k}, v192, v193")
    a("s_cmp_eq_u32 s7, 0")
    a("s_cselect_b64 s[46:47], -1, 0")
    for k in range(4):
        a(f"v_cndmask_b32 v{196+k}, v{SA+4+k}, v{SA+k}, s[46:47]")
    a("s_lshl_b32 s46, s5, 9")
    a("v_lshl_add_u32 v11, v3, 5, s46")
    a("v_lshlrev_b32 v12, 3, v0")
    a("v_lshlrev_b32 v13, 4, v0")
    a("s_mul_i32 s50, s7, 24576")
    a("s_and_b32 s46, s6, 15")
    a("s_lshl_b32 s46, s46, 9")
    a("s_add_u32 s50, s50, s46")
    a(f"s_add_u32 s50, s50, {WS_MOD}")
    a("s_lshl_b32 s51, s6, 9")
    a(f"s_add_u32 s51, s51, {WS_MOD + 8192}")
    a(f"s_add_u32 s52, s51, 24576")
    def m_finish(ldsoff, sdst, lab):
        write_partials(ACm, 11, 0) if ldsoff == 0 else None
        a("s_waitcnt lgkmcnt(0)")
        a("s_barrier")
        a("s_cmp_lg_u32 s5, 0")
        a(f"s_cbranch_scc1 {lab}")
        for p in range(8):
            a(f"ds_read_b64 v[{200+2*p}:{201+2*p}], v12 offset:{p*256}")
        a("s_waitcnt lgkmcnt(0)")
        for p in range(1, 8):
            for k in range(2): a(f"v_add_f32 v{200+k}, v{200+k}, v{200+2*p+k}")
        a("v_mov_b32 v202, 0")
        a("v_mov_b32 v203, s32")
        a("s_mov_b32 exec_hi, 0")
        a(f"buffer_store_dwordx4 v[200:203], v13, s[20:23], s{sdst} offen sc1")
        a("s_mov_b64 exec, -1")
        a(f"{lab}:")
        a("s_barrier")
    a("s_waitcnt vmcnt(0)")
    stamp(3)
    perm_group(W0, SPm)
    mfma_group(ACm, 196, SPm, True)
    m_finish(0, 50, "L_m0")
    stamp(4)
    for t in range(2):
        for j in range(8):
            r = W0 + 32 + 32*t + 4*j
            a(f"s_add_u32 s46, s39, {(256*t + j)*6144}")
            a(f"buffer_load_dwordx4 v[{r}:{r+3}], v6, s[8:11], s46 offen{nt}")
    a("s_waitcnt vmcnt(8)")
    perm_group(W0+32, SPm)
    mfma_group(ACm, SA, SPm, True)
    m_finish(0, 51, "L_m1")
    a("s_waitcnt vmcnt(0)")
    perm_group(W0+64, SPm)
    mfma_group(ACm, SA+4, SPm, True)
    m_finish(0, 52, "L_m2")
    stamp(5)
    a("s_cmp_lg_u32 s5, 0")
    a("s_cbranch_scc1 L_end")
    a(f"""
    v_and_b32 v4, 7, v0
    s_lshl_b32 s46, s6, 5
    v_lshl_add_u32 v5, v4, 2, s46
    buffer_load_dword v16, v5, s[12:15], 0 offen
    v_lshlrev_b32 v6, 4, v4
    s_lshl_b32 s46, s6, 7
    s_add_u32 s47, s46, {WS_MOD + 8192}
    s_add_u32 s48, s46, {WS_MOD + 8192 + 24576}
    s_add_u32 s49, s46, {WS_MOD + 20480}
    s_add_u32 s50, s46, {WS_MOD + 20480 + 24576}
    """)
    poll([f"buffer_load_dwordx4 v[20:23], v6, s[20:23], s47 offen sc1",
          f"buffer_load_dwordx4 v[24:27], v6, s[20:23], s48 offen sc1",
          f"buffer_load_dwordx4 v[28:31], v6, s[20:23], s49 offen sc1",
          f"buffer_load_dwordx4 v[32:35], v6, s[20:23], s50 offen sc1"], [23, 27, 31, 35], "L_pg")
    a("v_add_f32 v20, v20, v24"); a("v_add_f32 v21, v21, v25")
    a("v_add_f32 v28, v28, v32"); a("v_add_f32 v29, v29, v33")
    rnd2(20, 21, 22); rnd2(28, 29, 22)
    lo(18, 16); hi(19, 16)
    a(f"""
    v_lshrrev_b32 v7, 3, v0
    v_lshl_add_u32 v7, v7, 12, v6
    s_add_u32 s47, s46, {WS_AO}
    """)
    lds_ = []
    for t in range(8):
        a(f"s_add_u32 s{48+t}, s47, {t*32768}")
        lds_.append(f"buffer_load_dwordx4 v[{40+4*t}:{43+4*t}], v7, s[20:23], s{48+t} offen sc1")
    a(f"s_lshl_b32 s47, s6, 6")
    a(f"s_add_u32 s47, s47, {WS_X1}")
    a(f"v_lshlrev_b32 v8, 3, v4")
    stamp(6)
    poll(lds_, [43+4*t for t in range(8)], "L_pa")
    stamp(7)
    for t in range(1, 8):
        a(f"v_add_f32 v40, v40, v{40+4*t}"); a(f"v_add_f32 v41, v41, v{41+4*t}")
    xred(40, 42, "v_add_f32", (3, 4, 5))
    xred(41, 43, "v_add_f32", (3, 4, 5))
    rnd2(40, 41, 42)
    a("v_mul_f32 v40, v40, v20"); a("v_mul_f32 v41, v41, v21")
    rnd2(40, 41, 42)
    a("v_add_f32 v40, v40, v18"); a("v_add_f32 v41, v41, v19")
    a("v_cvt_pk_bf16_f32 v36, v40, v41")
    a("v_mov_b32 v37, s32")
    a("s_mov_b64 exec, 0xff")
    a("buffer_store_dwordx2 v[36:37], v8, s[20:23], s47 offen sc1")
    a("s_mov_b64 exec, -1")
    stamp(8)
    lo(18, 36); hi(19, 36)
    a(f"s_add_u32 s47, s46, {WS_YP}")
    lds_ = []
    for t in range(4):
        a(f"s_add_u32 s{48+t}, s47, {t*32768}")
    a("v_and_b32 v9, 0x3fff, v7")
    for t in range(3):
        lds_.append(f"buffer_load_dwordx4 v[{40+4*t}:{43+4*t}], v7, s[20:23], s{48+t} offen sc1")
    lds_.append(f"buffer_load_dwordx4 v[52:55], v9, s[20:23], s51 offen sc1")
    a("s_mov_b32 s44, -1"); a("s_mov_b32 s45, 0")
    poll(lds_, [43, 47, 51, 55], "L_py")
    stamp(9)
    a("v_cndmask_b32 v52, 0, v52, s[44:45]"); a("v_cndmask_b32 v53, 0, v53, s[44:45]")
    for t in range(1, 4):
        a(f"v_add_f32 v40, v40, v{40+4*t}"); a(f"v_add_f32 v41, v41, v{41+4*t}")
    xred(40, 42, "v_add_f32", (3, 4, 5))
    xred(41, 43, "v_add_f32", (3, 4, 5))
    rnd2(40, 41, 42)
    a("v_mul_f32 v40, v40, v28"); a("v_mul_f32 v41, v41, v29")
    rnd2(40, 41, 42)
    a("v_add_f32 v40, v40, v18"); a("v_add_f32 v41, v41, v19")
    a("v_cvt_pk_bf16_f32 v36, v40, v41")
    a("s_mov_b64 exec, 0xff")
    a("buffer_store_dword v36, v5, s[28:31], 0 offen")
    a("s_cmp_lg_u32 s6, 0")
    a("s_cbranch_scc1 L_m_noep")
    a("s_mov_b64 exec, 1")
    a("v_mov_b32 v38, 0")
    a("buffer_store_dword v37, v38, s[20:23], 0 offen sc1")
    a("L_m_noep:")
    a("s_mov_b64 exec, -1")
    stamp(10)
    a("s_branch L_end")

    a("L_ef:")
    a(f"""
    s_sub_u32 s6, s4, 28
    s_lshl_b32 s6, s6, 3
    s_add_u32 s6, s6, s3             ; e
    s_cmp_ge_u32 s6, 28
    s_cbranch_scc1 L_exit
    s_load_dwordx2 s[8:9], s[0:1], 48
    s_load_dwordx2 s[12:13], s[0:1], 56
    s_load_dwordx2 s[16:17], s[0:1], 64
    """)
    srd(8, 512*3584); srd(12, 512*3584); srd(16, 1792*1024)
    G, U, Dn, SPe = 16, 80, 144, 208
    a(f"""
    v_lshrrev_b32 v4, 3, v3          ; sub
    v_and_b32 v5, 7, v3              ; o
    v_lshlrev_b32 v4, 2, v4
    v_add_u32 v4, v4, v2             ; 4*sub+gq
    s_mov_b32 s36, {8*3584}
    v_mul_lo_u32 v6, v4, s36
    v_lshl_add_u32 v6, v5, 4, v6     ; voff g/u
    s_mul_i32 s36, s5, {128*3584}
    s_lshl_b32 s37, s6, 7
    s_add_u32 s36, s36, s37
    v_lshlrev_b32 v7, 13, v2
    v_lshl_add_u32 v7, v3, 4, v7
    s_lshl_b32 s38, s5, 8
    s_lshl_b32 s39, s6, 16
    s_add_u32 s39, s39, s38
    s_waitcnt lgkmcnt(0)
    """)
    stamp(1)
    get_tag()
    for (base, sr) in ((G, 8), (U, 12)):
        for rg in range(2):
            for j in range(8):
                r = base + 4*(8*rg+j)
                a(f"s_add_u32 s37, s36, {(64*rg+j)*3584}")
                a(f"buffer_load_dwordx4 v[{r}:{r+3}], v6, s[{sr}:{sr+3}], s37 offen{nt}")
    for rg in range(2):
        for j in range(8):
            r = Dn + 4*(8*rg+j)
            if j % 4 == 0: a(f"s_add_u32 s37, s39, {(32*rg+j)*1024}")
            a(f"buffer_load_dwordx4 v[{r}:{r+3}], v7, s[16:19], s37 offen offset:{(j%4)*1024}{nt}")
    stamp(2)
    fin_tag()
    for k in range(6):
        a(f"s_waitcnt vmcnt({40-8*k})")
        perm_group(16+32*k, SPe if k == 0 else 16+32*(k-1))
    stamp(3)
    ACe = 176
    a("v_lshlrev_b32 v8, 4, v0")
    a("s_lshl_b32 s46, s5, 10")
    a(f"s_add_u32 s47, s46, {WS_MOD + 12288}")
    a(f"s_add_u32 s48, s46, {WS_MOD + 12288 + 24576}")
    a(f"s_add_u32 s49, s46, {WS_MOD + 16384}")
    a(f"s_add_u32 s50, s46, {WS_MOD + 16384 + 24576}")
    poll([f"buffer_load_dwordx4 v[176:179], v8, s[20:23], s47 offen sc1",
          f"buffer_load_dwordx4 v[180:183], v8, s[20:23], s48 offen sc1",
          f"buffer_load_dwordx4 v[184:187], v8, s[20:23], s49 offen sc1",
          f"buffer_load_dwordx4 v[188:191], v8, s[20:23], s50 offen sc1"], [179, 183, 187, 191], "L_ps")
    a("v_add_f32 v240, v176, v180"); a("v_add_f32 v241, v177, v181")
    a("v_add_f32 v242, v184, v188"); a("v_add_f32 v243, v185, v189")
    rnd2(240, 241, 244); rnd2(242, 243, 244)
    a("v_add_f32 v242, 1.0, v242"); a("v_add_f32 v243, 1.0, v243")
    rnd2(242, 243, 244)
    gq_masks()
    a(f"""
    s_mov_b32 s46, {WS_X1}
    s_lshl_b32 s47, s5, 9
    s_add_u32 s47, s47, {WS_X1}
    v_lshlrev_b32 v9, 3, v0
    v_lshl_add_u32 v10, v0, 2, s38   ; h write: 256w + 4l
    v_lshl_add_u32 v11, v4, 4, s38   ; h read
    s_lshl_b32 s48, s5, 9
    v_lshl_add_u32 v12, v3, 5, s48
    v_lshlrev_b32 v13, 2, v0
    v_lshlrev_b32 v5, 4, v2          ; gq*16
    v_lshl_add_u32 v6, v3, 6, v5
    s_lshl_b32 s48, s6, 12
    s_lshl_b32 s49, s5, 10
    s_add_u32 s48, s48, s49
    s_add_u32 s48, s48, {WS_YP}
    s_lshl_b32 s49, s5, 7
    v_lshl_add_u32 v7, v0, 1, s49    ; f write: 128w + 2l
    v_add_u32 v5, s49, v5
    """)
    stamp(4)
    poll([f"buffer_load_dwordx4 v[176:179], v8, s[20:23], s46 offen sc1",
          f"buffer_load_dwordx4 v[180:183], v8, s[20:23], s46 offen offset:1024 sc1",
          f"buffer_load_dwordx2 v[184:185], v9, s[20:23], s47 offen sc1"], [177, 179, 181, 183, 185], "L_px")
    stamp(5)
    ln_stats([176, 178, 180, 182], 188, 186, 187)
    lo(188, 184); hi(189, 184)
    a("v_sub_f32 v188, v188, v186"); a("v_sub_f32 v189, v189, v186")
    rnd2(188, 189, 190)
    a("v_mul_f32 v188, v188, v187"); a("v_mul_f32 v189, v189, v187")
    rnd2(188, 189, 190)
    a("v_mul_f32 v188, v188, v242"); a("v_mul_f32 v189, v189, v243")
    rnd2(188, 189, 190)
    a("v_add_f32 v188, v188, v240"); a("v_add_f32 v189, v189, v241")
    a("v_cvt_pk_bf16_f32 v190, v188, v189")
    a("ds_write_b32 v10, v190 offset:8192")
    a("s_waitcnt lgkmcnt(0)")
    a("ds_read_b128 v[244:247], v11 offset:8192")
    a(f"ds_read_b128 v[248:251], v11 offset:{8192+128}")
    a("s_waitcnt lgkmcnt(0)")
    mfma_group(ACe, 244, 208, True)
    mfma_group(ACe, 248, 16, False)
    mfma_group(208, 244, 48, True)
    mfma_group(208, 248, 80, False)
    write_partials(ACe, 12, 0)
    a("v_add_u32 v12, 2048, v12")
    write_partials(208, 12, 0)
    a("s_waitcnt lgkmcnt(0)")
    a("s_barrier")
    for p in range(0, 8, 2):
        a(f"ds_read2st64_b32 v[{16+p}:{17+p}], v13 offset0:{p} offset1:{p+1}")
    for p in range(0, 8, 2):
        a(f"ds_read2st64_b32 v[{24+p}:{25+p}], v13 offset0:{8+p} offset1:{8+p+1}")
    a("s_waitcnt lgkmcnt(0)")
    for p in range(1, 8):
        a(f"v_add_f32 v16, v16, v{16+p}"); a(f"v_add_f32 v24, v24, v{24+p}")
    rnd2(16, 24, 17)
    import math
    k0 = math.sqrt(2.0/math.pi)
    a(f"v_mul_f32 v17, v16, v16")
    a(f"v_mov_b32 v18, {hex(f2u(0.044715))}")
    a(f"v_fma_f32 v17, v17, v18, 1.0")
    a(f"v_mul_f32 v17, v17, v16")
    a(f"v_mul_f32 v17, {hex(f2u(-2*k0*L2E))}, v17")
    a("v_exp_f32 v17, v17")
    a("v_add_f32 v17, 1.0, v17")
    a("v_rcp_f32 v17, v17")
    a("v_mul_f32 v16, v16, v17")
    a("v_cvt_pk_bf16_f32 v17, v16, v16")
    lo(16, 17)
    a("v_mul_f32 v16, v16, v24")
    a("v_cvt_pk_bf16_f32 v17, v16, v16")
    a("ds_write_b16 v7, v17 offset:9216")
    a("s_waitcnt lgkmcnt(0)")
    a("ds_read_b128 v[244:247], v5 offset:9216")
    a(f"ds_read_b128 v[248:251], v5 offset:{9216+64}")
    a("s_waitcnt lgkmcnt(0)")
    mfma_group(ACe, 244, 112, True)
    mfma_group(ACe, 248, 144, False)
    sel_pair(ACe, 240)
    a("v_mov_b32 v242, 0")
    a("v_mov_b32 v243, s32")
    a("buffer_store_dwordx4 v[240:243], v6, s[20:23], s48 offen sc1")
    stamp(6)

    a("L_end:")
    if diag:
        a("s_waitcnt vmcnt(0)")
        a("s_memrealtime s[90:91]")
        a("s_waitcnt lgkmcnt(0)")
        a("s_lshl_b32 s36, s2, 2")
        a("s_add_u32 s36, s36, s5")
        a("s_lshl_b32 s36, s36, 6")
        a(f"s_add_u32 s36, s36, {WS_DBG}")
        a("v_mov_b32 v1, 0")
        a("s_mov_b64 exec, 1")
        for i in range(16):
            a(f"v_mov_b32 v2, s{60+2*i}")
            a(f"buffer_store_dword v2, v1, s[20:23], s36 offen offset:{4*i}")
            a("s_nop 0")
        a("s_waitcnt vmcnt(0)")
    a("L_exit:")
    lines = hazard.fix(a.lines)
    return wrap("\n".join(lines) + "\n", 256, 256, 16384, 256)

if __name__ == "__main__":
    open("k1.s", "w").write(gen(False))
    open("k1d.s", "w").write(gen(True))
```
